```python
import torch

def _softmax(x, axis=-1):
    return torch.softmax(x, dim=axis)

def _gelu(x):
    return torch.nn.functional.gelu(x, approximate='tanh')

def _silu(x):
    return torch.nn.functional.silu(x)

def _sigmoid(x):
    return torch.sigmoid(x)

def _layernorm(x, axis=-1, eps=1e-05):
    m = x.mean(dim=axis, keepdim=True)
    v = x.var(dim=axis, keepdim=True, unbiased=False)
    return (x - m) / torch.sqrt(v + eps)

def _scatter_add(tgt, idx, src, axis=0):
    return tgt.clone().index_add_(axis, idx, src)

def _segment_sum(src, seg, n):
    out = torch.zeros((n,) + src.shape[1:], dtype=src.dtype)
    return out.index_add_(0, seg, src)

def _pad(x, pw):
    flat = tuple((v for pair in reversed(pw) for v in pair))
    return torch.nn.functional.pad(x, flat)
kernel_name = 'standalone__ragged_sequences_varlen_flash_attn__ragged'

def setup_inputs():

    _w = lambda a: (lambda t: t.to(torch.bfloat16) if t.is_floating_point() else t)(torch.as_tensor(a))
    cu = torch.tensor([0, 506, 648, 1109, 1416, 1494, 1644, 1941, 2399], dtype=torch.int64)
    T = int(cu[-1])
    Hq, Hkv, D = (16, 8, 192)
    assert Hq % Hkv == 0
    return {'q': _w((lambda *s: torch.randn(*s, dtype=torch.bfloat16) * 0.8)(T, Hq, D)), 'k': _w((lambda *s: torch.randn(*s, dtype=torch.bfloat16) * 0.8)(T, Hkv, D)), 'v': _w((lambda *s: torch.randn(*s, dtype=torch.bfloat16) * 0.05)(T, Hkv, D)), 'cu': _w(cu)}

def reference(q, k, v, cu):
    T, Hq, D = q.shape
    Hkv = k.shape[1]
    rep = Hq // Hkv
    scale = D ** (-0.5)
    outs = []
    for i in range(len(cu) - 1):
        s, e = (int(cu[i]), int(cu[i + 1]))
        L = e - s
        qi = q[s:e].clone()
        ki = (lambda x, n, axis: torch.repeat_interleave(x, n, dim=axis))(k[s:e], rep, axis=1)
        vi = (lambda x, n, axis: torch.repeat_interleave(x, n, dim=axis))(v[s:e], rep, axis=1)
        logits = torch.einsum('qhd,khd->hqk', qi, ki) * scale
        ar = torch.arange(L)
        neg = (lambda x, dt: x.to(dt))(ar[None, :] > ar[:, None], logits.dtype) * -1000000000.0
        p = _softmax(logits + neg[None, :, :], axis=-1)
        outs.append(torch.einsum('hqk,khd->qhd', p, vi))
    return torch.concatenate(outs, axis=0)
```

```python
import math, struct, sys

NAME = "standalone__ragged_sequences_varlen_flash_attn__ragged_kernel"
CU = [0, 506, 648, 1109, 1416, 1494, 1644, 1941, 2399]
QROW, KROW = 6144, 3072
UNIT = 32 * KROW
SLOT = 12288
KB, VB, QB = 0, 4 * SLOT, 8 * SLOT
LDS_BYTES = 12 * SLOT

def f2u(x): return struct.unpack("<I", struct.pack("<f", x))[0]
CSCALE = math.log2(math.e) / math.sqrt(192.0)

class Opt:
    stamps = False
    store_flags = ""
    thr = 1024.0
    dma_cost = 16
    budget = 24

V_KA = 1
V_VE, V_VO = 5, 6
V_OFFK = 7
V_OFFV = 10
V_MREF, V_L, V_PS = 13, 14, 15
V_O = 16
V_S = [112, 128]
V_P = [144, 152]
V_T = 160
V_X = 168
V_ST = 176
V_QE = 224
V_QO = 227
V_OA = 230
V_RB = 238
V_SE, V_SO = 239, 240
V_NINF = 241
V_QA = 242
V_LANE = 246
V_RINV = 248
A_Q, A_K, A_V = 0, 48, 96
S_TAB = 24
SRD_Q, SRD_K, SRD_V, SRD_O = 8, 12, 16, 20
S_MASK = 32
S_W, S_HW, S_G = 64, 65, 66
S_KOFF, S_VOFF = 67, 68
S_WB = 69
S_CNT = 70
S_FIRST = 71
S_C, S_THR = 72, 73
S_Q0 = 74
S_TMP = 78
S_STAMP = 84
S_QB = 100

def vr(b, n=1): return f"v{b}" if n == 1 else f"v[{b}:{b+n-1}]"
def ar(b, n=1): return f"a{b}" if n == 1 else f"a[{b}:{b+n-1}]"
def sr(b, n=1): return f"s{b}" if n == 1 else f"s[{b}:{b+n-1}]"

class G:
    def __init__(self): self.L = []
    def e(self, s): self.L.append("    " + s)
    def lab(self, s): self.L.append(s + ":")
    def c(self, s): self.L.append("    ; " + s)

def tiles():
    t = []
    for s in range(8):
        L = CU[s + 1] - CU[s]
        for q0 in range(0, L, 64):
            t.append((q0 // 32 + 2, s, q0, L))
    t.sort(key=lambda x: (-x[0], -(min(x[3], x[2] + 64) - x[2])))
    return t

def mfma_qk(par, s):
    d = vr(V_S[par], 16)
    return f"v_mfma_f32_32x32x16_bf16 {d}, {ar(A_K+4*s,4)}, {ar(A_Q+4*s,4)}, {'0' if s == 0 else d}"
def mfma_pv(par, ks, t):
    d = vr(V_O + 16 * t, 16)
    f = ks * 6 + t
    return f"v_mfma_f32_32x32x16_bf16 {d}, {ar(A_V+4*f,4)}, {vr(V_P[par]+4*ks,4)}, {d}"
def kread(slot, s):
    return f"ds_read_b128 {ar(A_K+4*s,4)}, {vr(V_KA+(s&3))} offset:{KB+slot*SLOT+128*(s>>2)}"
def vread(slot, f, e):
    ks, t = divmod(f, 6)
    a = V_VE if t % 2 == 0 else V_VO
    return f"ds_read_b64_tr_b16 {ar(A_V+4*f+2*e,2)}, {vr(a)} offset:{slot*SLOT+(16*ks+8*e)*384+64*t}"

def softmax_ops(par):
    S, P = V_S[par], V_P[par]
    ops = []
    for i in range(18):
        if i < 16: ops.append((4, f"v_fma_f32 {vr(V_T+i%8)}, {vr(S+i)}, {sr(S_C)}, -{vr(V_MREF)}"))
        if 0 <= i - 1 < 16: ops.append((8, f"v_exp_f32 {vr(V_T+(i-1)%8)}, {vr(V_T+(i-1)%8)}"))
        j = i - 2
        if j == 1: ops.append((4, f"v_add_f32 {vr(V_PS)}, {vr(V_T)}, {vr(V_T+1)}"))
        elif 1 < j < 16: ops.append((4, f"v_add_f32 {vr(V_PS)}, {vr(V_PS)}, {vr(V_T+j%8)}"))
        if 0 <= j < 16 and j % 2 == 1:
            ops.append((4, f"v_cvt_pk_bf16_f32 {vr(P+j//2)}, {vr(V_T+(j-1)%8)}, {vr(V_T+j%8)}"))
    return ops

def dma_group(kslot, vslot):
    o = []
    o.append((4, f"s_add_u32 m0, {sr(S_WB)}, {KB+kslot*SLOT}"))
    o.append((4, f"s_mov_b32 {sr(SRD_V+2)}, {sr(SRD_K+2)}"))
    o.append((4, f"s_mov_b32 {sr(S_VOFF)}, {sr(S_KOFF)}"))
    o.append((4, f"s_sub_u32 {sr(S_KOFF)}, {sr(S_KOFF)}, {UNIT}"))
    o.append((4, f"s_cselect_b32 {sr(SRD_K+2)}, 0, {sr(SRD_K+2)}"))
    o.append((4, f"s_cselect_b32 {sr(S_KOFF)}, 0, {sr(S_KOFF)}"))
    for i in range(3):
        o.append((Opt.dma_cost, f"buffer_load_dwordx4 {vr(V_OFFK+i)}, {sr(SRD_K,4)}, {sr(S_KOFF)} offen offset:{1024*i} lds"))
    o.append((8, f"s_add_u32 m0, {sr(S_WB)}, {VB+vslot*SLOT}\n    s_nop 0"))
    for i in range(3):
        o.append((Opt.dma_cost, f"buffer_load_dwordx4 {vr(V_OFFV+i)}, {sr(SRD_V,4)}, {sr(S_VOFF)} offen offset:{1024*i} lds"))
    return o

def row_max(g, par, dst):
    S = V_S[par]
    g.e(f"v_max3_f32 {vr(dst)}, {vr(S)}, {vr(S+1)}, {vr(S+2)}")
    g.e(f"v_max3_f32 {vr(dst+1)}, {vr(S+3)}, {vr(S+4)}, {vr(S+5)}")
    g.e(f"v_max3_f32 {vr(dst)}, {vr(dst)}, {vr(S+6)}, {vr(S+7)}")
    g.e(f"v_max3_f32 {vr(dst+1)}, {vr(dst+1)}, {vr(S+8)}, {vr(S+9)}")
    g.e(f"v_max3_f32 {vr(dst)}, {vr(dst)}, {vr(S+10)}, {vr(S+11)}")
    g.e(f"v_max3_f32 {vr(dst+1)}, {vr(dst+1)}, {vr(S+12)}, {vr(S+13)}")
    g.e(f"v_max3_f32 {vr(dst)}, {vr(dst)}, {vr(S+14)}, {vr(S+15)}")
    g.e(f"v_max_f32 {vr(dst)}, {vr(dst)}, {vr(dst+1)}")
    g.e(f"v_mov_b32 {vr(dst+1)}, {vr(dst)}")
    g.e("s_nop 1")
    g.e(f"v_permlane32_swap_b32 {vr(dst)}, {vr(dst+1)}")
    g.e(f"v_max_f32 {vr(dst)}, {vr(dst)}, {vr(dst+1)}")

def diag_mask_max(g, par):
    S = V_S[par]
    for j in range(16):
        g.e(f"v_cndmask_b32 {vr(S+j)}, {vr(S+j)}, {vr(V_NINF)}, {sr(S_MASK+2*j,2)}")
    row_max(g, par, V_X)
    g.e(f"v_mul_f32 {vr(V_MREF)}, {sr(S_C)}, {vr(V_X)}")

def rare_path(g, label, par, back):
    g.lab(label)
    g.c("a row max rose well past the reference: move to the true running max")
    g.e("s_nop 7"); g.e("s_nop 7")
    row_max(g, par, V_X)
    g.e(f"v_mul_f32 {vr(V_X)}, {sr(S_C)}, {vr(V_X)}")
    g.e(f"v_max_f32 {vr(V_X)}, {vr(V_X)}, {vr(V_MREF)}")
    g.e(f"v_sub_f32 {vr(V_X+1)}, {vr(V_MREF)}, {vr(V_X)}")
    g.e(f"v_exp_f32 {vr(V_X+1)}, {vr(V_X+1)}")
    g.e(f"v_mov_b32 {vr(V_MREF)}, {vr(V_X)}")
    g.e(f"v_mul_f32 {vr(V_L)}, {vr(V_L)}, {vr(V_X+1)}")
    for j in range(96):
        g.e(f"v_mul_f32 {vr(V_O+j)}, {vr(V_O+j)}, {vr(V_X+1)}")
    for c, t in softmax_ops(par): g.e(t)
    g.e("s_nop 1")
    g.e(f"s_branch {back}")

def stamp(g, i):
    if Opt.stamps:
        g.e(f"s_memrealtime {sr(S_STAMP+2*i,2)}")
        g.e("s_waitcnt lgkmcnt(0)")

BAR_GAP = 17
SM_FIRST_GAP = 13
SM_LAST_GAP = 10

def plan():
    fixed = [[] for _ in range(24)]
    cost = [0] * 24
    def put(gap, item, c): fixed[gap].append(item); cost[gap] += c
    for s in range(6): put(s, ("k_cur", 6 + s), 4)
    for f in range(12):
        put(2 + f, ("v", f, 0), 4); put(2 + f, ("v", f, 1), 4)
    for m in (3, 6, 9, 12): put(m - 1, ("wait", m), 4)
    put(11, ("check",), 12)
    put(12, ("first",), 8)
    put(BAR_GAP, ("bar",), 12)
    for s in range(6): put(18 + s, ("k_nxt", s), 4)
    put(23, ("wait", 0), 4)
    put(23, ("loop",), 8)
    d = dma_group(0, 0)
    dgaps = [18, 18, 18, 19, 19, 19, 19, 20, 21, 14, 14, 15, 16]
    assert len(dgaps) == len(d)
    for i, gp in enumerate(dgaps): put(gp, ("dma", i), d[i][0])
    order = list(range(SM_FIRST_GAP, 24)) + list(range(0, SM_LAST_GAP + 1))
    ops = softmax_ops(0)
    for level in range(8, 200, 2):
        c2 = list(cost); assign = {gp: [] for gp in order}; i = 0
        for gp in order:
            while i < len(ops) and c2[gp] + ops[i][0] <= level + 2:
                assign[gp].append(i); c2[gp] += ops[i][0]; i += 1
        if i == len(ops): break
    nfirst = sum(len(assign[gp]) for gp in range(SM_FIRST_GAP, 24))
    return fixed, assign, nfirst, c2, level

def emit_period(g, pos, fixed, assign):
    cur, nxt = pos & 1, (pos + 1) & 1
    sm_cur, sm_nxt = softmax_ops(cur), softmax_ops(nxt)
    d_new = dma_group((pos + 1) & 3, pos & 3)
    d_old = dma_group(pos & 3, (pos - 1) & 3)
    q = [("k", s) for s in range(6)]
    done = 0
    def need(items):
        nonlocal done
        idx = max(q.index(it) for it in items) + 1
        if idx > done:
            g.e(f"s_waitcnt lgkmcnt({min(len(q)-idx,15)})"); done = idx
    for m in range(24):
        if m < 12: g.e(mfma_qk(nxt, m))
        else: g.e(mfma_pv(cur, (m - 12) // 6, (m - 12) % 6))
        pre = [it for it in fixed[m] if it[0] in ("first", "bar")]
        mid = [it for it in fixed[m] if it[0] in ("k_cur", "k_nxt", "v", "dma")]
        post = [it for it in fixed[m] if it[0] in ("wait", "check", "loop")]
        for it in pre:
            if it[0] == "first" and pos == 0:
                g.e(f"s_cmp_lg_u32 {sr(S_FIRST)}, 0")
                g.e("s_cbranch_scc1 L_first")
                g.lab("L_first_back")
            if it[0] == "bar":
                g.e(f"s_waitcnt vmcnt({VM_BAR}) lgkmcnt(0)"); done = len(q)
                g.e("s_barrier")
        sm = [(sm_nxt if m >= SM_FIRST_GAP else sm_cur)[i][1] for i in assign.get(m, [])]
        mids = []
        for it in mid:
            if it[0] == "k_cur": mids.append(kread((pos + 1) & 3, it[1])); q.append(("k", it[1]))
            elif it[0] == "k_nxt": mids.append(kread((pos + 2) & 3, it[1])); q.append(("kn", it[1]))
            elif it[0] == "v": mids.append(vread(pos & 3, it[1], it[2])); q.append(("v", it[1], it[2]))
            elif it[0] == "dma": mids.append((d_new if m > BAR_GAP else d_old)[it[1]][1])
        seq = []
        if m == SM_FIRST_GAP: seq, mids = mids, []
        while mids or sm:
            if mids: seq.append(mids.pop(0))
            if sm: seq.append(sm.pop(0))
        for s in seq: g.e(s)
        for it in post:
            if it[0] == "check":
                g.e(f"v_cmp_lt_f32 vcc, {sr(S_THR)}, {vr(V_PS)}")
                g.e(f"s_cbranch_vccnz L_rare{pos}")
                g.lab(f"L_back{pos}")
                g.e(f"v_add_f32 {vr(V_L)}, {vr(V_L)}, {vr(V_PS)}")
        for it in post:
            if it[0] == "wait":
                n = it[1]
                if n == 0: need([("kn", s) for s in range(3)])
                elif n < 12: need([("k", s) for s in range(n, n + 3)])
                else: need([("v", f, 1) for f in range(6)])
        for it in post:
            if it[0] == "loop":
                if pos in (0, 2):
                    g.e(f"s_sub_u32 {sr(S_CNT)}, {sr(S_CNT)}, 1")
                    g.e(f"s_cbranch_scc1 L_exit{pos}")
                if pos == 3: g.e("s_branch L_loop")

VM_BAR = 12

def build():
    g = G()
    T = tiles()
    NT = len(T)
    hdr = open("standalone__ragged_sequences_varlen_flash_attn__ragged.s.ref").read().split("\n")
    head = [l for l in hdr if l.startswith(";") and "@launch" not in l]
    out = head + [f"; @launch grid=({NT*8},1,1) block=(256,1,1) lds={LDS_BYTES}",
                  '.amdgcn_target "amdgcn-amd-amdhsa--gfx950"', ".text", f".globl {NAME}", ".p2align 8",
                  f".type {NAME},@function", f"{NAME}:"]
    e = g.e
    fixed, assign, nfirst, cost, level = plan()
    sys.stderr.write(f"level {level} nfirst {nfirst} cost {cost}\n")
    e(f"s_cmp_ge_u32 s2, {NT*8}")
    e("s_cbranch_scc1 L_end")
    stamp(g, 0)
    e("s_load_dwordx4 s[4:7], s[0:1], 0")
    e(f"s_load_dwordx2 {sr(SRD_V,2)}, s[0:1], 16")
    e(f"s_load_dwordx2 {sr(SRD_O,2)}, s[0:1], 32")
    e(f"s_getpc_b64 {sr(S_TMP,2)}")
    g.lab("L_pc")
    e(f"s_lshr_b32 {sr(S_TMP+2)}, s2, 3")
    e(f"s_lshl_b32 {sr(S_TMP+2)}, {sr(S_TMP+2)}, 5")
    e(f"s_add_u32 {sr(S_TMP+2)}, {sr(S_TMP+2)}, L_table-L_pc")
    e(f"s_add_u32 {sr(S_TMP)}, {sr(S_TMP)}, {sr(S_TMP+2)}")
    e(f"s_addc_u32 {sr(S_TMP+1)}, {sr(S_TMP+1)}, 0")
    e(f"s_load_dwordx8 {sr(S_TAB,8)}, {sr(S_TMP,2)}, 0")
    e(f"s_and_b32 {sr(S_G)}, s2, 7")
    e(f"v_lshrrev_b32 {vr(V_X)}, 6, v0")
    e(f"v_and_b32 {vr(V_LANE)}, 63, v0")
    e(f"v_readfirstlane_b32 {sr(S_W)}, {vr(V_X)}")
    L = vr(V_LANE)
    X = lambda i: vr(V_X + i)
    e("s_nop 1")
    e(f"s_lshr_b32 {sr(S_HW)}, {sr(S_W)}, 1")
    e(f"s_mul_i32 {sr(S_WB)}, {sr(S_W)}, 3072")
    e(f"s_and_b32 {sr(S_TMP+2)}, {sr(S_W)}, 1")
    e(f"s_lshl_b32 {sr(S_TMP+3)}, {sr(S_TMP+2)}, 6")
    e(f"s_mul_i32 {sr(S_TMP+4)}, {sr(S_W)}, {8*KROW}")
    for i in range(3):
        e(f"v_add_u32 {X(0)}, {64*i}, {L}")
        e(f"v_mul_u32_u24 {X(1)}, 2731, {X(0)}")
        e(f"v_lshrrev_b32 {X(1)}, 16, {X(1)}")
        e(f"v_mul_u32_u24 {X(2)}, 24, {X(1)}")
        e(f"v_sub_u32 {X(2)}, {X(0)}, {X(2)}")
        e(f"v_lshrrev_b32 {X(3)}, 1, {X(1)}")
        e(f"v_xor_b32 {X(4)}, {X(2)}, {X(3)}")
        e(f"v_lshlrev_b32 {X(4)}, 4, {X(4)}")
        e(f"v_mul_u32_u24 {X(5)}, {KROW}, {X(1)}")
        if i: e(f"v_subrev_u32 {X(5)}, {1024*i}, {X(5)}")
        e(f"v_add_u32 {X(6)}, {X(5)}, {X(4)}")
        e(f"v_mul_u32_u24 {X(7)}, {KROW}, {X(1)}")
        e(f"v_add_u32 {vr(V_QE+i)}, {X(7)}, {X(6)}")
        e(f"v_xor_b32 {vr(V_QO+i)}, 64, {vr(V_QE+i)}")
        e(f"v_xor_b32 {X(6)}, {sr(S_TMP+3)}, {X(6)}")
        e(f"v_add_u32 {vr(V_OFFK+i)}, {sr(S_TMP+4)}, {X(6)}")
        e(f"v_and_b32 {X(3)}, 1, {X(3)}")
        e(f"v_lshlrev_b32 {X(3)}, 2, {X(3)}")
        e(f"v_xor_b32 {X(4)}, {X(2)}, {X(3)}")
        e(f"v_lshlrev_b32 {X(4)}, 4, {X(4)}")
        e(f"v_add3_u32 {vr(V_OFFV+i)}, {X(5)}, {X(4)}, {sr(S_TMP+4)}")
    e(f"s_lshl_b32 {sr(S_TMP+5)}, {sr(S_G)}, 1")
    e(f"s_add_u32 {sr(S_TMP+5)}, {sr(S_TMP+5)}, {sr(S_TMP+2)}")
    e(f"s_mul_i32 {sr(S_TMP+5)}, {sr(S_TMP+5)}, 384")
    e(f"s_mul_i32 {sr(S_Q0)}, {sr(S_HW)}, {32*QROW}")
    e(f"s_add_u32 {sr(S_Q0)}, {sr(S_Q0)}, {sr(S_TMP+5)}")
    for j in range(1, 4): e(f"s_add_u32 {sr(S_Q0+j)}, {sr(S_Q0)}, {j*8*QROW}")
    e(f"s_mul_i32 {sr(S_TMP+5)}, {sr(S_G)}, 384")
    e(f"s_mul_i32 {sr(S_QB)}, {sr(S_W)}, {SLOT}")
    e(f"s_add_u32 {sr(S_QB)}, {sr(S_QB)}, {QB}")
    e(f"s_mov_b32 {sr(SRD_K+3)}, 0x20000")
    e(f"s_mov_b32 {sr(SRD_Q+3)}, 0x20000")
    e(f"s_mov_b32 {sr(SRD_V+3)}, 0x20000")
    e(f"s_mov_b32 {sr(SRD_O+3)}, 0x20000")
    e(f"s_add_u32 m0, {sr(S_WB)}, {KB}")
    e("s_waitcnt lgkmcnt(0)")
    stamp(g, 1)
    e(f"s_add_u32 {sr(SRD_K)}, s6, {sr(S_TAB+2)}")
    e(f"s_addc_u32 {sr(SRD_K+1)}, s7, 0")
    e(f"s_mov_b32 {sr(SRD_K+2)}, {sr(S_TAB+3)}")
    e(f"s_add_u32 {sr(S_KOFF)}, {sr(S_TAB+5)}, {sr(S_TMP+5)}")
    for i in range(3):
        e(f"buffer_load_dwordx4 {vr(V_OFFK+i)}, {sr(SRD_K,4)}, {sr(S_KOFF)} offen offset:{1024*i} lds")
    e(f"s_add_u32 {sr(SRD_Q)}, s4, {sr(S_TAB)}")
    e(f"s_addc_u32 {sr(SRD_Q+1)}, s5, 0")
    e(f"s_mov_b32 {sr(SRD_Q+2)}, {sr(S_TAB+1)}")
    for j in range(4):
        e(f"s_add_u32 m0, {sr(S_QB)}, {j*3072}")
        e("s_nop 0")
        for i in range(3):
            e(f"buffer_load_dwordx4 {vr((V_QO if j&1 else V_QE)+i)}, {sr(SRD_Q,4)}, {sr(S_Q0+j)} offen offset:{1024*i} lds")
    e(f"s_add_u32 {sr(SRD_V)}, {sr(SRD_V)}, {sr(S_TAB+2)}")
    e(f"s_addc_u32 {sr(SRD_V+1)}, {sr(SRD_V+1)}, 0")
    for j in range(3):
        for c, t in dma_group(j + 1, j): e(t)
    e(f"s_add_u32 {sr(SRD_O)}, {sr(SRD_O)}, {sr(S_TAB)}")
    e(f"s_addc_u32 {sr(SRD_O+1)}, {sr(SRD_O+1)}, 0")
    e(f"s_mov_b32 {sr(SRD_O+2)}, {sr(S_TAB+1)}")
    e(f"v_and_b32 {X(0)}, 31, {L}")
    e(f"v_lshrrev_b32 {X(1)}, 5, {L}")
    e(f"v_bfe_u32 {X(2)}, {L}, 1, 3")
    e(f"v_mul_u32_u24 {X(3)}, 384, {X(0)}")
    e(f"v_xor_b32 {X(4)}, {X(1)}, {X(2)}")
    e(f"v_lshl_add_u32 {vr(V_KA)}, {X(4)}, 4, {X(3)}")
    for j in range(1, 4): e(f"v_xor_b32 {vr(V_KA+j)}, {32*j}, {vr(V_KA)}")
    for j in range(4): e(f"v_add_u32 {vr(V_QA+j)}, {sr(S_QB)}, {vr(V_KA+j)}")
    e(f"v_lshl_add_u32 {X(4)}, {X(2)}, 4, {X(3)}")
    e(f"v_lshl_add_u32 {X(4)}, {X(1)}, 3, {X(4)}")
    e(f"v_add_u32 {vr(V_OA)}, {sr(S_QB)}, {X(4)}")
    for j in range(1, 8): e(f"v_xor_b32 {vr(V_OA+j)}, {16*j}, {vr(V_OA)}")
    e(f"v_bfe_u32 {X(2)}, {L}, 2, 2")
    e(f"v_lshl_add_u32 {X(3)}, {X(1)}, 2, {X(2)}")
    e(f"v_mul_u32_u24 {X(3)}, 384, {X(3)}")
    e(f"v_bfe_u32 {X(4)}, {L}, 4, 1")
    e(f"v_lshl_add_u32 {X(3)}, {X(4)}, 5, {X(3)}")
    e(f"v_and_b32 {X(4)}, 3, {L}")
    e(f"v_lshl_add_u32 {X(3)}, {X(4)}, 3, {X(3)}")
    e(f"v_add_u32 {X(3)}, {VB}, {X(3)}")
    e(f"v_bfe_u32 {X(4)}, {L}, 3, 1")
    e(f"v_lshlrev_b32 {X(4)}, 6, {X(4)}")
    e(f"v_add_u32 {vr(V_VE)}, {X(3)}, {X(4)}")
    e(f"v_sub_u32 {vr(V_VO)}, {X(3)}, {X(4)}")
    e(f"v_lshrrev_b32 {X(2)}, 3, {L}")
    e(f"v_and_b32 {X(3)}, 7, {L}")
    e(f"v_mul_u32_u24 {X(4)}, 384, {X(2)}")
    e(f"v_lshl_add_u32 {X(4)}, {X(3)}, 4, {X(4)}")
    e(f"v_add_u32 {vr(V_RB)}, {sr(S_QB)}, {X(4)}")
    e(f"v_lshrrev_b32 {X(4)}, 4, {L}")
    e(f"v_xor_b32 {X(3)}, {X(3)}, {X(4)}")
    e(f"v_mul_u32_u24 {X(4)}, {QROW}, {X(2)}")
    e(f"v_lshl_add_u32 {vr(V_SE)}, {X(3)}, 4, {X(4)}")
    e(f"v_xor_b32 {vr(V_SO)}, 64, {vr(V_SE)}")
    e(f"v_mov_b32 {vr(V_NINF)}, 0xff800000")
    e(f"v_mov_b32 {vr(V_L)}, 0")
    e(f"v_mov_b32 {vr(V_MREF)}, 0")
    for j in range(96): e(f"v_mov_b32 {vr(V_O+j)}, 0")
    for j in range(16):
        m = 0
        for l in range(64):
            if 8 * (j >> 2) + 4 * (l >> 5) + (j & 3) > (l & 31): m |= 1 << l
        e(f"s_mov_b32 {sr(S_MASK+2*j)}, 0x{m & 0xffffffff:x}")
        e(f"s_mov_b32 {sr(S_MASK+2*j+1)}, 0x{m >> 32:x}")
    e(f"s_mov_b32 {sr(S_C)}, 0x{f2u(CSCALE):x}")
    e(f"s_mov_b32 {sr(S_THR)}, 0x{f2u(Opt.thr):x}")
    e(f"s_lshr_b32 {sr(S_CNT)}, {sr(S_TAB+4)}, 1")
    e(f"s_sub_u32 {sr(S_CNT)}, {sr(S_CNT)}, 1")
    e(f"s_xor_b32 {sr(S_FIRST)}, {sr(S_HW)}, 1")
    e("s_waitcnt vmcnt(18)")
    e("s_barrier")
    stamp(g, 2)
    for s in range(12):
        e(f"ds_read_b128 {ar(A_Q+4*s,4)}, {vr(V_QA+(s&3))} offset:{128*(s>>2)}")
        e(kread(0, s))
    e(f"s_cmp_eq_u32 {sr(S_HW)}, 0")
    e("s_cbranch_scc1 L_skip0")
    for s in range(12):
        e(f"s_waitcnt lgkmcnt({min(15, 22-2*s)})")
        e(mfma_qk(0, s))
    e("s_nop 7"); e("s_nop 3")
    diag_mask_max(g, 0)
    e("s_branch L_sm0")
    g.lab("L_skip0")
    for j in range(16): e(f"v_mov_b32 {vr(V_S[0]+j)}, {vr(V_NINF)}")
    g.lab("L_sm0")
    for c, t in softmax_ops(0)[:nfirst]: e(t)
    e("s_waitcnt vmcnt(12) lgkmcnt(0)")
    e("s_barrier")
    stamp(g, 3)
    d3 = dma_group(0, 3)
    for c, t in d3[:9]: e(t)
    for s in range(6): e(kread(1, s))
    e("s_waitcnt lgkmcnt(3)")
    g.lab("L_loop")
    for pos in range(4): emit_period(g, pos, fixed, assign)
    g.lab("L_exit2")
    e(f"v_add_u32 {vr(V_VE)}, {2*SLOT}, {vr(V_VE)}")
    e(f"v_add_u32 {vr(V_VO)}, {2*SLOT}, {vr(V_VO)}")
    g.lab("L_exit0")
    stamp(g, 4)
    rest = [t for c, t in softmax_ops(1)[nfirst:]]
    forder = [ks * 6 + t for t in range(6) for ks in range(2)]
    vq = [vread(1, f, ee) for f in forder for ee in range(2)]
    while rest or vq:
        if vq: e(vq.pop(0))
        if rest: e(rest.pop(0))
    e(f"v_cmp_lt_f32 vcc, {sr(S_THR)}, {vr(V_PS)}")
    e("s_cbranch_vccnz L_rare4")
    g.lab("L_back4")
    e(f"v_add_f32 {vr(V_L)}, {vr(V_L)}, {vr(V_PS)}")
    e(f"v_mov_b32 {X(0)}, {vr(V_L)}")
    e("s_waitcnt lgkmcnt(15)")
    def norm(t):
        o = []
        for j in range(0, 16, 2):
            o.append(f"v_pk_mul_f32 {vr(V_O+16*t+j,2)}, {vr(V_O+16*t+j,2)}, {vr(V_RINV,2)}")
        for gg in range(4):
            b = V_O + 16 * t + 4 * gg
            o.append(f"v_cvt_pk_bf16_f32 {vr(b)}, {vr(b)}, {vr(b+1)}")
            o.append(f"v_cvt_pk_bf16_f32 {vr(b+1)}, {vr(b+2)}, {vr(b+3)}")
        for gg in range(4):
            b = V_O + 16 * t + 4 * gg
            o.append(f"ds_write_b64 {vr(V_OA+4*(t&1)+gg)}, {vr(b,2)} offset:{128*(t>>1)}")
        return o
    def back(tp):
        return [f"ds_read_b128 {vr(V_ST+16*tp+4*i,4)}, {vr(V_RB)} offset:{i*3072+128*tp}" for i in range(4)]
    def store(tp):
        return [f"buffer_store_dwordx4 {vr(V_ST+16*tp+4*i,4)}, {vr(V_SO if i&1 else V_SE)}, {sr(SRD_O,4)}, {sr(S_Q0+i)} offen offset:{128*tp}{Opt.store_flags}" for i in range(4)]
    e(mfma_pv(1, 0, 0))
    e(f"v_permlane32_swap_b32 {vr(V_L)}, {X(0)}")
    e(f"v_add_f32 {vr(V_L)}, {vr(V_L)}, {X(0)}")
    e(f"v_rcp_f32 {vr(V_RINV)}, {vr(V_L)}")
    e("s_waitcnt lgkmcnt(12)")
    e(mfma_pv(1, 1, 0))
    e(f"v_mov_b32 {vr(V_RINV+1)}, {vr(V_RINV)}")
    e(mfma_pv(1, 0, 1))
    e("s_waitcnt lgkmcnt(8)")
    e(mfma_pv(1, 1, 1))
    e(mfma_pv(1, 0, 2))
    e("s_waitcnt lgkmcnt(0)")
    e("s_nop 6")
    n0 = norm(0)
    for s in n0[:10]: e(s)
    e(mfma_pv(1, 1, 2))
    for s in n0[10:]: e(s)
    e(mfma_pv(1, 0, 3))
    n1 = norm(1)
    for s in n1[:10]: e(s)
    e(mfma_pv(1, 1, 3))
    for s in n1[10:]: e(s)
    e(mfma_pv(1, 0, 4))
    n2 = norm(2)
    for s in n2[:10]: e(s)
    e(mfma_pv(1, 1, 4))
    e("s_waitcnt lgkmcnt(0)")
    for s in back(0): e(s)
    for s in n2[10:]: e(s)
    e(mfma_pv(1, 0, 5))
    n3 = norm(3)
    for s in n3[:10]: e(s)
    e(mfma_pv(1, 1, 5))
    e("s_waitcnt lgkmcnt(4)")
    for s in store(0): e(s)
    for s in n3[10:]: e(s)
    for s in norm(4)[:16]: e(s)
    e("s_waitcnt lgkmcnt(0)")
    for s in back(1): e(s)
    for s in norm(4)[16:]: e(s)
    for s in norm(5)[:16]: e(s)
    e("s_waitcnt lgkmcnt(4)")
    for s in store(1): e(s)
    for s in norm(5)[16:]: e(s)
    e("s_waitcnt lgkmcnt(0)")
    for s in back(2): e(s)
    e("s_waitcnt lgkmcnt(0)")
    for s in store(2): e(s)
    if Opt.stamps:
        stamp(g, 5)
        e("s_waitcnt vmcnt(0)")
        stamp(g, 6)
        e(f"s_getreg_b32 {sr(S_STAMP+14)}, hwreg(HW_REG_HW_ID)")
        e(f"s_getreg_b32 {sr(S_STAMP+15)}, hwreg(HW_REG_XCC_ID)")
        e("s_load_dwordx2 s[4:5], s[0:1], 48")
        e("s_waitcnt lgkmcnt(0)")
        e("s_mov_b32 s6, 0x1000000")
        e("s_mov_b32 s7, 0x20000")
        e(f"s_lshl_b32 {sr(S_TMP)}, s2, 3")
        e(f"s_add_u32 {sr(S_TMP)}, {sr(S_TMP)}, {sr(S_W)}")
        e(f"s_lshl_b32 {sr(S_TMP)}, {sr(S_TMP)}, 7")
        for i in range(16): e(f"v_writelane_b32 {X(0)}, {sr(S_STAMP+i)}, {i}")
        e(f"v_lshlrev_b32 {X(1)}, 2, {L}")
        e("s_mov_b64 exec, 0xffff")
        e(f"buffer_store_dword {X(0)}, {X(1)}, s[4:7], {sr(S_TMP)} offen")
    g.lab("L_end")
    e("s_endpgm")
    g.lab("L_first")
    e("s_nop 7"); e("s_nop 3")
    diag_mask_max(g, 1)
    e(f"s_mov_b32 {sr(S_FIRST)}, 0")
    e("s_branch L_first_back")
    for pos in range(4): rare_path(g, f"L_rare{pos}", pos & 1, f"L_back{pos}")
    rare_path(g, "L_rare4", 1, "L_back4")
    g.L.append(".p2align 6")
    g.L.append(".type L_table,@object")
    g.lab("L_table")
    for n, s, q0, Ln in T:
        ent = [(CU[s] + q0) * QROW, (Ln - q0) * QROW, CU[s] * KROW, min(Ln, q0 + 64) * KROW, n, (n - 1) * UNIT, 0, 0]
        g.L.append("    .long " + ", ".join(str(x) for x in ent))
    out += g.L
    out += ['.section .rodata,"a"', ".p2align 6", f".amdhsa_kernel {NAME}",
            "  .amdhsa_next_free_vgpr 400", "  .amdhsa_next_free_sgpr 102", "  .amdhsa_accum_offset 256",
            "  .amdhsa_group_segment_fixed_size 0", "  .amdhsa_kernarg_size 56", "  .amdhsa_user_sgpr_count 2",
            "  .amdhsa_user_sgpr_kernarg_segment_ptr 1", "  .amdhsa_system_sgpr_workgroup_id_x 1", ".end_amdhsa_kernel", ""]
    return "\n".join(out)

if __name__ == "__main__":
    import argparse
    ap = argparse.ArgumentParser()
    ap.add_argument("-o", default="k1.s")
    ap.add_argument("--stamps", action="store_true")
    ap.add_argument("--store", default="")
    a = ap.parse_args()
    Opt.stamps = a.stamps
    Opt.store_flags = (" " + a.store) if a.store else ""
    open(a.o, "w").write(build())
```

```python
import math, struct, sys

NAME = "standalone__ragged_sequences_varlen_flash_attn__ragged_kernel"
CU = [0, 506, 648, 1109, 1416, 1494, 1644, 1941, 2399]
QROW, KROW = 6144, 3072
UNIT = 32 * KROW
SLOT = 12288
KB, VB, QB = 0, 4 * SLOT, 8 * SLOT
LDS_BYTES = 12 * SLOT

def f2u(x): return struct.unpack("<I", struct.pack("<f", x))[0]
CSCALE = math.log2(math.e) / math.sqrt(192.0)

class Opt:
    stamps = False
    store_flags = ""
    thr = 1024.0
    dma_cost = 16
    budget = 24
    exp = ""

V_KA = 1
V_VE, V_VO = 5, 6
V_OFFK = 7
V_OFFV = 10
V_MREF, V_L, V_PS = 13, 14, 15
V_O = 16
V_S = [112, 128]
V_P = [144, 152]
V_T = 160
V_X = 168
V_ST = 176
V_QE = 224
V_QO = 227
V_OA = 230
V_RB = 238
V_SE, V_SO = 239, 240
V_NINF = 241
V_QA = 242
V_LANE = 246
V_RINV = 248
A_Q, A_K, A_V = 0, 48, 96
S_TAB = 24
SRD_Q, SRD_K, SRD_V, SRD_O = 8, 12, 16, 20
S_MASK = 32
S_W, S_HW, S_G = 64, 65, 66
S_KOFF, S_VOFF = 67, 68
S_WB = 69
S_CNT = 70
S_FIRST = 71
S_C, S_THR = 72, 73
S_Q0 = 74
S_TMP = 78
S_STAMP = 84
S_QB = 100

def vr(b, n=1): return f"v{b}" if n == 1 else f"v[{b}:{b+n-1}]"
def ar(b, n=1): return f"a{b}" if n == 1 else f"a[{b}:{b+n-1}]"
def sr(b, n=1): return f"s{b}" if n == 1 else f"s[{b}:{b+n-1}]"

class G:
    def __init__(self): self.L = []
    def e(self, s): self.L.append("    " + s)
    def lab(self, s): self.L.append(s + ":")
    def c(self, s): self.L.append("    ; " + s)

def tiles():
    t = []
    for s in range(8):
        L = CU[s + 1] - CU[s]
        for q0 in range(0, L, 64):
            t.append((q0 // 32 + 2, s, q0, L))
    t.sort(key=lambda x: (-x[0], -(min(x[3], x[2] + 64) - x[2])))
    return t

def mfma_qk(par, s):
    d = vr(V_S[par], 16)
    return f"v_mfma_f32_32x32x16_bf16 {d}, {ar(A_K+4*s,4)}, {ar(A_Q+4*s,4)}, {'0' if s == 0 else d}"
def mfma_pv(par, ks, t):
    d = vr(V_O + 16 * t, 16)
    f = ks * 6 + t
    return f"v_mfma_f32_32x32x16_bf16 {d}, {ar(A_V+4*f,4)}, {vr(V_P[par]+4*ks,4)}, {d}"
def kread(slot, s):
    return f"ds_read_b128 {ar(A_K+4*s,4)}, {vr(V_KA+(s&3))} offset:{KB+slot*SLOT+128*(s>>2)}"
def vread(slot, f, e):
    ks, t = divmod(f, 6)
    a = V_VE if t % 2 == 0 else V_VO
    return f"ds_read_b64_tr_b16 {ar(A_V+4*f+2*e,2)}, {vr(a)} offset:{slot*SLOT+(16*ks+8*e)*384+64*t}"

def softmax_ops(par):
    S, P = V_S[par], V_P[par]
    ops = []
    for i in range(18):
        if i < 16: ops.append((4, f"v_fma_f32 {vr(V_T+i%8)}, {vr(S+i)}, {sr(S_C)}, -{vr(V_MREF)}"))
        if 0 <= i - 1 < 16: ops.append((8, f"v_exp_f32 {vr(V_T+(i-1)%8)}, {vr(V_T+(i-1)%8)}"))
        j = i - 2
        if j == 1: ops.append((4, f"v_add_f32 {vr(V_PS)}, {vr(V_T)}, {vr(V_T+1)}"))
        elif 1 < j < 16: ops.append((4, f"v_add_f32 {vr(V_PS)}, {vr(V_PS)}, {vr(V_T+j%8)}"))
        if 0 <= j < 16 and j % 2 == 1:
            ops.append((4, f"v_cvt_pk_bf16_f32 {vr(P+j//2)}, {vr(V_T+(j-1)%8)}, {vr(V_T+j%8)}"))
    return ops

def dma_group(kslot, vslot):
    o = []
    o.append((4, f"s_add_u32 m0, {sr(S_WB)}, {KB+kslot*SLOT}"))
    o.append((4, f"s_mov_b32 {sr(SRD_V+2)}, {sr(SRD_K+2)}"))
    o.append((4, f"s_mov_b32 {sr(S_VOFF)}, {sr(S_KOFF)}"))
    o.append((4, f"s_sub_u32 {sr(S_KOFF)}, {sr(S_KOFF)}, {UNIT}"))
    o.append((4, f"s_cselect_b32 {sr(SRD_K+2)}, 0, {sr(SRD_K+2)}"))
    o.append((4, f"s_cselect_b32 {sr(S_KOFF)}, 0, {sr(S_KOFF)}"))
    for i in range(3):
        o.append((Opt.dma_cost, f"buffer_load_dwordx4 {vr(V_OFFK+i)}, {sr(SRD_K,4)}, {sr(S_KOFF)} offen offset:{1024*i} lds"))
    o.append((8, f"s_add_u32 m0, {sr(S_WB)}, {VB+vslot*SLOT}\n    s_nop 0"))
    for i in range(3):
        o.append((Opt.dma_cost, f"buffer_load_dwordx4 {vr(V_OFFV+i)}, {sr(SRD_V,4)}, {sr(S_VOFF)} offen offset:{1024*i} lds"))
    return o

def row_max(g, par, dst):
    S = V_S[par]
    g.e(f"v_max3_f32 {vr(dst)}, {vr(S)}, {vr(S+1)}, {vr(S+2)}")
    g.e(f"v_max3_f32 {vr(dst+1)}, {vr(S+3)}, {vr(S+4)}, {vr(S+5)}")
    g.e(f"v_max3_f32 {vr(dst)}, {vr(dst)}, {vr(S+6)}, {vr(S+7)}")
    g.e(f"v_max3_f32 {vr(dst+1)}, {vr(dst+1)}, {vr(S+8)}, {vr(S+9)}")
    g.e(f"v_max3_f32 {vr(dst)}, {vr(dst)}, {vr(S+10)}, {vr(S+11)}")
    g.e(f"v_max3_f32 {vr(dst+1)}, {vr(dst+1)}, {vr(S+12)}, {vr(S+13)}")
    g.e(f"v_max3_f32 {vr(dst)}, {vr(dst)}, {vr(S+14)}, {vr(S+15)}")
    g.e(f"v_max_f32 {vr(dst)}, {vr(dst)}, {vr(dst+1)}")
    g.e(f"v_mov_b32 {vr(dst+1)}, {vr(dst)}")
    g.e("s_nop 1")
    g.e(f"v_permlane32_swap_b32 {vr(dst)}, {vr(dst+1)}")
    g.e(f"v_max_f32 {vr(dst)}, {vr(dst)}, {vr(dst+1)}")

def diag_mask_max(g, par):
    S = V_S[par]
    for j in range(16):
        g.e(f"v_cndmask_b32 {vr(S+j)}, {vr(S+j)}, {vr(V_NINF)}, {sr(S_MASK+2*j,2)}")
    row_max(g, par, V_X)
    g.e(f"v_mul_f32 {vr(V_MREF)}, {sr(S_C)}, {vr(V_X)}")

def rare_path(g, label, par, back):
    g.lab(label)
    g.c("a row max rose well past the reference: move to the true running max")
    g.e("s_nop 7"); g.e("s_nop 7")
    row_max(g, par, V_X)
    g.e(f"v_mul_f32 {vr(V_X)}, {sr(S_C)}, {vr(V_X)}")
    g.e(f"v_max_f32 {vr(V_X)}, {vr(V_X)}, {vr(V_MREF)}")
    g.e(f"v_sub_f32 {vr(V_X+1)}, {vr(V_MREF)}, {vr(V_X)}")
    g.e(f"v_exp_f32 {vr(V_X+1)}, {vr(V_X+1)}")
    g.e(f"v_mov_b32 {vr(V_MREF)}, {vr(V_X)}")
    g.e(f"v_mul_f32 {vr(V_L)}, {vr(V_L)}, {vr(V_X+1)}")
    for j in range(96):
        g.e(f"v_mul_f32 {vr(V_O+j)}, {vr(V_O+j)}, {vr(V_X+1)}")
    for c, t in softmax_ops(par): g.e(t)
    g.e("s_nop 1")
    g.e(f"s_branch {back}")

V_STAMP = 250
def stamp(g, i):
    if Opt.stamps:
        g.e(f"s_memrealtime {sr(S_STAMP,2)}")
        g.e(f"s_memtime {sr(S_STAMP+2,2)}")
        g.e("s_waitcnt lgkmcnt(0)")
        for k in range(4): g.e(f"v_writelane_b32 {vr(V_STAMP)}, {sr(S_STAMP+k)}, {4*i+k}")

def stamp_out(g):
    e = g.e
    e(f"s_getreg_b32 {sr(S_STAMP)}, hwreg(HW_REG_HW_ID)")
    e(f"s_getreg_b32 {sr(S_STAMP+1)}, hwreg(HW_REG_XCC_ID)")
    e(f"v_writelane_b32 {vr(V_STAMP)}, {sr(S_STAMP)}, 62")
    e(f"v_writelane_b32 {vr(V_STAMP)}, {sr(S_STAMP+1)}, 63")
    e("s_load_dwordx2 s[4:5], s[0:1], 48")
    e("s_waitcnt lgkmcnt(0)")
    e("s_mov_b32 s6, 0x1000000")
    e("s_mov_b32 s7, 0x20000")
    e(f"s_lshl_b32 {sr(S_TMP)}, s2, 3")
    e(f"s_add_u32 {sr(S_TMP)}, {sr(S_TMP)}, {sr(S_W)}")
    e(f"s_lshl_b32 {sr(S_TMP)}, {sr(S_TMP)}, 8")
    e(f"v_lshlrev_b32 {vr(V_X+1)}, 2, {vr(V_LANE)}")
    e(f"buffer_store_dword {vr(V_STAMP)}, {vr(V_X+1)}, s[4:7], {sr(S_TMP)} offen")

BAR_GAP = 17
SM_FIRST_GAP = 13
SM_LAST_GAP = 10

def plan():
    fixed = [[] for _ in range(24)]
    cost = [0] * 24
    def put(gap, item, c): fixed[gap].append(item); cost[gap] += c
    for s in range(6): put(s, ("k_cur", 6 + s), 4)
    for f in range(12):
        put(2 + f, ("v", f, 0), 4); put(2 + f, ("v", f, 1), 4)
    for m in (3, 6, 9, 12): put(m - 1, ("wait", m), 4)
    put(11, ("check",), 12)
    put(12, ("first",), 8)
    put(BAR_GAP, ("bar",), 12)
    for s in range(6): put(18 + s, ("k_nxt", s), 4)
    put(23, ("wait", 0), 4)
    put(23, ("loop",), 8)
    d = dma_group(0, 0)
    dgaps = [18, 18, 18, 19, 19, 19, 19, 20, 21, 14, 14, 15, 16]
    assert len(dgaps) == len(d)
    for i, gp in enumerate(dgaps): put(gp, ("dma", i), d[i][0])
    order = list(range(SM_FIRST_GAP, 24)) + list(range(0, SM_LAST_GAP + 1))
    ops = softmax_ops(0)
    for level in range(8, 200, 2):
        c2 = list(cost); assign = {gp: [] for gp in order}; i = 0
        for gp in order:
            while i < len(ops) and c2[gp] + ops[i][0] <= level + 2:
                assign[gp].append(i); c2[gp] += ops[i][0]; i += 1
        if i == len(ops): break
    nfirst = sum(len(assign[gp]) for gp in range(SM_FIRST_GAP, 24))
    return fixed, assign, nfirst, c2, level

def emit_period(g, pos, fixed, assign):
    cur, nxt = pos & 1, (pos + 1) & 1
    sm_cur, sm_nxt = softmax_ops(cur), softmax_ops(nxt)
    d_new = dma_group((pos + 1) & 3, pos & 3)
    d_old = dma_group(pos & 3, (pos - 1) & 3)
    q = [("k", s) for s in range(6)]
    done = 0
    def need(items):
        nonlocal done
        idx = max(q.index(it) for it in items) + 1
        if idx > done:
            g.e(f"s_waitcnt lgkmcnt({min(len(q)-idx,15)})"); done = idx
    for m in range(24):
        if m < 12: g.e(mfma_qk(nxt, m))
        else: g.e(mfma_pv(cur, (m - 12) // 6, (m - 12) % 6))
        pre = [it for it in fixed[m] if it[0] in ("first", "bar")]
        mid = [it for it in fixed[m] if it[0] in ("k_cur", "k_nxt", "v", "dma")]
        post = [it for it in fixed[m] if it[0] in ("wait", "check", "loop")]
        for it in pre:
            if it[0] == "first" and pos == 0:
                g.e(f"s_cmp_lg_u32 {sr(S_FIRST)}, 0")
                g.e("s_cbranch_scc1 L_first")
                g.lab("L_first_back")
            if it[0] == "bar":
                g.e(f"s_waitcnt vmcnt({VM_BAR}) lgkmcnt(0)"); done = len(q)
                g.e("s_barrier")
        sm = [(sm_nxt if m >= SM_FIRST_GAP else sm_cur)[i][1] for i in assign.get(m, [])]
        mids = []
        for it in mid:
            if it[0] == "k_cur": mids.append(kread((pos + 1) & 3, it[1])); q.append(("k", it[1]))
            elif it[0] == "k_nxt": mids.append(kread((pos + 2) & 3, it[1])); q.append(("kn", it[1]))
            elif it[0] == "v": mids.append(vread(pos & 3, it[1], it[2])); q.append(("v", it[1], it[2]))
            elif it[0] == "dma": mids.append((d_new if m > BAR_GAP else d_old)[it[1]][1])
        seq = []
        if m == SM_FIRST_GAP: seq, mids = mids, []
        while mids or sm:
            if mids: seq.append(mids.pop(0))
            if sm: seq.append(sm.pop(0))
        for s in seq: g.e(s)
        for it in post:
            if it[0] == "check":
                g.e(f"v_cmp_lt_f32 vcc, {sr(S_THR)}, {vr(V_PS)}")
                g.e(f"s_cbranch_vccnz L_rare{pos}")
                g.lab(f"L_back{pos}")
                g.e(f"v_add_f32 {vr(V_L)}, {vr(V_L)}, {vr(V_PS)}")
        for it in post:
            if it[0] == "wait":
                n = it[1]
                if n == 0: need([("kn", s) for s in range(3)])
                elif n < 12: need([("k", s) for s in range(n, n + 3)])
                else: need([("v", f, 1) for f in range(6)])
        for it in post:
            if it[0] == "loop":
                if pos in (0, 2):
                    g.e(f"s_sub_u32 {sr(S_CNT)}, {sr(S_CNT)}, 1")
                    g.e(f"s_cbranch_scc1 L_exit{pos}")
                if pos == 3: g.e("s_branch L_loop")

VM_BAR = 12

def build():
    g = G()
    T = tiles()
    NT = len(T)
    hdr = open("standalone__ragged_sequences_varlen_flash_attn__ragged.s.ref").read().split("\n")
    head = [l for l in hdr if l.startswith(";") and "@launch" not in l]
    out = head + [f"; @launch grid=({NT*8},1,1) block=(256,1,1) lds={LDS_BYTES}",
                  '.amdgcn_target "amdgcn-amd-amdhsa--gfx950"', ".text", f".globl {NAME}", ".p2align 8",
                  f".type {NAME},@function", f"{NAME}:"]
    e = g.e
    fixed, assign, nfirst, cost, level = plan()
    sys.stderr.write(f"level {level} nfirst {nfirst} cost {cost}\n")
    e(f"s_cmp_ge_u32 s2, {NT*8}")
    e("s_cbranch_scc1 L_end")
    stamp(g, 0)
    e("s_load_dwordx4 s[4:7], s[0:1], 0")
    e(f"s_load_dwordx2 {sr(SRD_V,2)}, s[0:1], 16")
    e(f"s_load_dwordx2 {sr(SRD_O,2)}, s[0:1], 32")
    e(f"s_getpc_b64 {sr(S_TMP,2)}")
    g.lab("L_pc")
    e(f"s_lshr_b32 {sr(S_TMP+2)}, s2, 3")
    e(f"s_lshl_b32 {sr(S_TMP+2)}, {sr(S_TMP+2)}, 5")
    e(f"s_add_u32 {sr(S_TMP+2)}, {sr(S_TMP+2)}, L_table-L_pc")
    e(f"s_add_u32 {sr(S_TMP)}, {sr(S_TMP)}, {sr(S_TMP+2)}")
    e(f"s_addc_u32 {sr(S_TMP+1)}, {sr(S_TMP+1)}, 0")
    e(f"s_load_dwordx8 {sr(S_TAB,8)}, {sr(S_TMP,2)}, 0")
    e(f"s_and_b32 {sr(S_G)}, s2, 7")
    e(f"v_lshrrev_b32 {vr(V_X)}, 6, v0")
    e(f"v_and_b32 {vr(V_LANE)}, 63, v0")
    e(f"v_readfirstlane_b32 {sr(S_W)}, {vr(V_X)}")
    L = vr(V_LANE)
    X = lambda i: vr(V_X + i)
    e("s_nop 1")
    e(f"s_lshr_b32 {sr(S_HW)}, {sr(S_W)}, 1")
    e(f"s_mul_i32 {sr(S_WB)}, {sr(S_W)}, 3072")
    e(f"s_and_b32 {sr(S_TMP+2)}, {sr(S_W)}, 1")
    e(f"s_lshl_b32 {sr(S_TMP+3)}, {sr(S_TMP+2)}, 6")
    e(f"s_mul_i32 {sr(S_TMP+4)}, {sr(S_W)}, {8*KROW}")
    for i in range(3):
        e(f"v_add_u32 {X(0)}, {64*i}, {L}")
        e(f"v_mul_u32_u24 {X(1)}, 2731, {X(0)}")
        e(f"v_lshrrev_b32 {X(1)}, 16, {X(1)}")
        e(f"v_mul_u32_u24 {X(2)}, 24, {X(1)}")
        e(f"v_sub_u32 {X(2)}, {X(0)}, {X(2)}")
        e(f"v_lshrrev_b32 {X(3)}, 1, {X(1)}")
        e(f"v_xor_b32 {X(4)}, {X(2)}, {X(3)}")
        e(f"v_lshlrev_b32 {X(4)}, 4, {X(4)}")
        e(f"v_mul_u32_u24 {X(5)}, {KROW}, {X(1)}")
        if i: e(f"v_subrev_u32 {X(5)}, {1024*i}, {X(5)}")
        e(f"v_add_u32 {X(6)}, {X(5)}, {X(4)}")
        e(f"v_mul_u32_u24 {X(7)}, {KROW}, {X(1)}")
        e(f"v_add_u32 {vr(V_QE+i)}, {X(7)}, {X(6)}")
        e(f"v_xor_b32 {vr(V_QO+i)}, 64, {vr(V_QE+i)}")
        e(f"v_xor_b32 {X(6)}, {sr(S_TMP+3)}, {X(6)}")
        e(f"v_add_u32 {vr(V_OFFK+i)}, {sr(S_TMP+4)}, {X(6)}")
        e(f"v_and_b32 {X(3)}, 1, {X(3)}")
        e(f"v_lshlrev_b32 {X(3)}, 2, {X(3)}")
        e(f"v_xor_b32 {X(4)}, {X(2)}, {X(3)}")
        e(f"v_lshlrev_b32 {X(4)}, 4, {X(4)}")
        e(f"v_add3_u32 {vr(V_OFFV+i)}, {X(5)}, {X(4)}, {sr(S_TMP+4)}")
    e(f"s_lshl_b32 {sr(S_TMP+5)}, {sr(S_G)}, 1")
    e(f"s_add_u32 {sr(S_TMP+5)}, {sr(S_TMP+5)}, {sr(S_TMP+2)}")
    e(f"s_mul_i32 {sr(S_TMP+5)}, {sr(S_TMP+5)}, 384")
    e(f"s_mul_i32 {sr(S_Q0)}, {sr(S_HW)}, {32*QROW}")
    e(f"s_add_u32 {sr(S_Q0)}, {sr(S_Q0)}, {sr(S_TMP+5)}")
    for j in range(1, 4): e(f"s_add_u32 {sr(S_Q0+j)}, {sr(S_Q0)}, {j*8*QROW}")
    e(f"s_mul_i32 {sr(S_TMP+5)}, {sr(S_G)}, 384")
    e(f"s_mul_i32 {sr(S_QB)}, {sr(S_W)}, {SLOT}")
    e(f"s_add_u32 {sr(S_QB)}, {sr(S_QB)}, {QB}")
    e(f"s_mov_b32 {sr(SRD_K+3)}, 0x20000")
    e(f"s_mov_b32 {sr(SRD_Q+3)}, 0x20000")
    e(f"s_mov_b32 {sr(SRD_V+3)}, 0x20000")
    e(f"s_mov_b32 {sr(SRD_O+3)}, 0x20000")
    e(f"s_add_u32 m0, {sr(S_WB)}, {KB}")
    e("s_waitcnt lgkmcnt(0)")
    stamp(g, 1)
    e(f"s_add_u32 {sr(SRD_K)}, s6, {sr(S_TAB+2)}")
    e(f"s_addc_u32 {sr(SRD_K+1)}, s7, 0")
    e(f"s_mov_b32 {sr(SRD_K+2)}, {sr(S_TAB+3)}")
    e(f"s_add_u32 {sr(S_KOFF)}, {sr(S_TAB+5)}, {sr(S_TMP+5)}")
    for i in range(3):
        e(f"buffer_load_dwordx4 {vr(V_OFFK+i)}, {sr(SRD_K,4)}, {sr(S_KOFF)} offen offset:{1024*i} lds")
    e(f"s_add_u32 {sr(SRD_Q)}, s4, {sr(S_TAB)}")
    e(f"s_addc_u32 {sr(SRD_Q+1)}, s5, 0")
    e(f"s_mov_b32 {sr(SRD_Q+2)}, {sr(S_TAB+1)}")
    for j in range(4):
        e(f"s_add_u32 m0, {sr(S_QB)}, {j*3072}")
        e("s_nop 0")
        for i in range(3):
            e(f"buffer_load_dwordx4 {vr((V_QO if j&1 else V_QE)+i)}, {sr(SRD_Q,4)}, {sr(S_Q0+j)} offen offset:{1024*i} lds")
    e(f"s_add_u32 {sr(SRD_V)}, {sr(SRD_V)}, {sr(S_TAB+2)}")
    e(f"s_addc_u32 {sr(SRD_V+1)}, {sr(SRD_V+1)}, 0")
    if Opt.exp == "k0q":
        e("s_waitcnt vmcnt(14)"); stamp(g, 2)
        e("s_waitcnt vmcnt(12)"); stamp(g, 3)
        e("s_waitcnt vmcnt(6)"); stamp(g, 4)
        e("s_waitcnt vmcnt(0)"); stamp(g, 5)
        e("s_barrier"); stamp(g, 6)
        stamp_out(g); e("s_endpgm")
    for j in range(3):
        for c, t in dma_group(j + 1, j): e(t)
    if Opt.exp == "all":
        e("s_waitcnt vmcnt(32)"); stamp(g, 2)
        e("s_waitcnt vmcnt(30)"); stamp(g, 3)
        e("s_waitcnt vmcnt(18)"); stamp(g, 4)
        e("s_waitcnt vmcnt(0)"); stamp(g, 5)
        e("s_barrier"); stamp(g, 6)
        stamp_out(g); e("s_endpgm")
    e(f"s_add_u32 {sr(SRD_O)}, {sr(SRD_O)}, {sr(S_TAB)}")
    e(f"s_addc_u32 {sr(SRD_O+1)}, {sr(SRD_O+1)}, 0")
    e(f"s_mov_b32 {sr(SRD_O+2)}, {sr(S_TAB+1)}")
    e(f"v_and_b32 {X(0)}, 31, {L}")
    e(f"v_lshrrev_b32 {X(1)}, 5, {L}")
    e(f"v_bfe_u32 {X(2)}, {L}, 1, 3")
    e(f"v_mul_u32_u24 {X(3)}, 384, {X(0)}")
    e(f"v_xor_b32 {X(4)}, {X(1)}, {X(2)}")
    e(f"v_lshl_add_u32 {vr(V_KA)}, {X(4)}, 4, {X(3)}")
    for j in range(1, 4): e(f"v_xor_b32 {vr(V_KA+j)}, {32*j}, {vr(V_KA)}")
    for j in range(4): e(f"v_add_u32 {vr(V_QA+j)}, {sr(S_QB)}, {vr(V_KA+j)}")
    e(f"v_lshl_add_u32 {X(4)}, {X(2)}, 4, {X(3)}")
    e(f"v_lshl_add_u32 {X(4)}, {X(1)}, 3, {X(4)}")
    e(f"v_add_u32 {vr(V_OA)}, {sr(S_QB)}, {X(4)}")
    for j in range(1, 8): e(f"v_xor_b32 {vr(V_OA+j)}, {16*j}, {vr(V_OA)}")
    e(f"v_bfe_u32 {X(2)}, {L}, 2, 2")
    e(f"v_lshl_add_u32 {X(3)}, {X(1)}, 2, {X(2)}")
    e(f"v_mul_u32_u24 {X(3)}, 384, {X(3)}")
    e(f"v_bfe_u32 {X(4)}, {L}, 4, 1")
    e(f"v_lshl_add_u32 {X(3)}, {X(4)}, 5, {X(3)}")
    e(f"v_and_b32 {X(4)}, 3, {L}")
    e(f"v_lshl_add_u32 {X(3)}, {X(4)}, 3, {X(3)}")
    e(f"v_add_u32 {X(3)}, {VB}, {X(3)}")
    e(f"v_bfe_u32 {X(4)}, {L}, 3, 1")
    e(f"v_lshlrev_b32 {X(4)}, 6, {X(4)}")
    e(f"v_add_u32 {vr(V_VE)}, {X(3)}, {X(4)}")
    e(f"v_sub_u32 {vr(V_VO)}, {X(3)}, {X(4)}")
    e(f"v_lshrrev_b32 {X(2)}, 3, {L}")
    e(f"v_and_b32 {X(3)}, 7, {L}")
    e(f"v_mul_u32_u24 {X(4)}, 384, {X(2)}")
    e(f"v_lshl_add_u32 {X(4)}, {X(3)}, 4, {X(4)}")
    e(f"v_add_u32 {vr(V_RB)}, {sr(S_QB)}, {X(4)}")
    e(f"v_lshrrev_b32 {X(4)}, 4, {L}")
    e(f"v_xor_b32 {X(3)}, {X(3)}, {X(4)}")
    e(f"v_mul_u32_u24 {X(4)}, {QROW}, {X(2)}")
    e(f"v_lshl_add_u32 {vr(V_SE)}, {X(3)}, 4, {X(4)}")
    e(f"v_xor_b32 {vr(V_SO)}, 64, {vr(V_SE)}")
    e(f"v_mov_b32 {vr(V_NINF)}, 0xff800000")
    e(f"v_mov_b32 {vr(V_L)}, 0")
    e(f"v_mov_b32 {vr(V_MREF)}, 0")
    for j in range(96): e(f"v_mov_b32 {vr(V_O+j)}, 0")
    for j in range(16):
        m = 0
        for l in range(64):
            if 8 * (j >> 2) + 4 * (l >> 5) + (j & 3) > (l & 31): m |= 1 << l
        e(f"s_mov_b32 {sr(S_MASK+2*j)}, 0x{m & 0xffffffff:x}")
        e(f"s_mov_b32 {sr(S_MASK+2*j+1)}, 0x{m >> 32:x}")
    e(f"s_mov_b32 {sr(S_C)}, 0x{f2u(CSCALE):x}")
    e(f"s_mov_b32 {sr(S_THR)}, 0x{f2u(Opt.thr):x}")
    e(f"s_lshr_b32 {sr(S_CNT)}, {sr(S_TAB+4)}, 1")
    e(f"s_sub_u32 {sr(S_CNT)}, {sr(S_CNT)}, 1")
    e(f"s_xor_b32 {sr(S_FIRST)}, {sr(S_HW)}, 1")
    e("s_waitcnt vmcnt(18)")
    e("s_barrier")
    stamp(g, 2)
    for s in range(12):
        e(f"ds_read_b128 {ar(A_Q+4*s,4)}, {vr(V_QA+(s&3))} offset:{128*(s>>2)}")
        e(kread(0, s))
    e(f"s_cmp_eq_u32 {sr(S_HW)}, 0")
    e("s_cbranch_scc1 L_skip0")
    for s in range(12):
        e(f"s_waitcnt lgkmcnt({min(15, 22-2*s)})")
        e(mfma_qk(0, s))
    e("s_nop 7"); e("s_nop 3")
    diag_mask_max(g, 0)
    e("s_branch L_sm0")
    g.lab("L_skip0")
    for j in range(16): e(f"v_mov_b32 {vr(V_S[0]+j)}, {vr(V_NINF)}")
    g.lab("L_sm0")
    for c, t in softmax_ops(0)[:nfirst]: e(t)
    e("s_waitcnt vmcnt(12) lgkmcnt(0)")
    e("s_barrier")
    stamp(g, 3)
    d3 = dma_group(0, 3)
    for c, t in d3[:9]: e(t)
    for s in range(6): e(kread(1, s))
    e("s_waitcnt lgkmcnt(3)")
    g.lab("L_loop")
    for pos in range(4): emit_period(g, pos, fixed, assign)
    g.lab("L_exit2")
    e(f"v_add_u32 {vr(V_VE)}, {2*SLOT}, {vr(V_VE)}")
    e(f"v_add_u32 {vr(V_VO)}, {2*SLOT}, {vr(V_VO)}")
    g.lab("L_exit0")
    stamp(g, 4)
    rest = [t for c, t in softmax_ops(1)[nfirst:]]
    forder = [ks * 6 + t for t in range(6) for ks in range(2)]
    vq = [vread(1, f, ee) for f in forder for ee in range(2)]
    while rest or vq:
        if vq: e(vq.pop(0))
        if rest: e(rest.pop(0))
    e(f"v_cmp_lt_f32 vcc, {sr(S_THR)}, {vr(V_PS)}")
    e("s_cbranch_vccnz L_rare4")
    g.lab("L_back4")
    e(f"v_add_f32 {vr(V_L)}, {vr(V_L)}, {vr(V_PS)}")
    e(f"v_mov_b32 {X(0)}, {vr(V_L)}")
    e("s_waitcnt lgkmcnt(15)")
    def norm(t):
        o = []
        for j in range(0, 16, 2):
            o.append(f"v_pk_mul_f32 {vr(V_O+16*t+j,2)}, {vr(V_O+16*t+j,2)}, {vr(V_RINV,2)}")
        for gg in range(4):
            b = V_O + 16 * t + 4 * gg
            o.append(f"v_cvt_pk_bf16_f32 {vr(b)}, {vr(b)}, {vr(b+1)}")
            o.append(f"v_cvt_pk_bf16_f32 {vr(b+1)}, {vr(b+2)}, {vr(b+3)}")
        for gg in range(4):
            b = V_O + 16 * t + 4 * gg
            o.append(f"ds_write_b64 {vr(V_OA+4*(t&1)+gg)}, {vr(b,2)} offset:{128*(t>>1)}")
        return o
    def back(tp):
        return [f"ds_read_b128 {vr(V_ST+16*tp+4*i,4)}, {vr(V_RB)} offset:{i*3072+128*tp}" for i in range(4)]
    def store(tp):
        return [f"buffer_store_dwordx4 {vr(V_ST+16*tp+4*i,4)}, {vr(V_SO if i&1 else V_SE)}, {sr(SRD_O,4)}, {sr(S_Q0+i)} offen offset:{128*tp}{Opt.store_flags}" for i in range(4)]
    e(mfma_pv(1, 0, 0))
    e(f"v_permlane32_swap_b32 {vr(V_L)}, {X(0)}")
    e(f"v_add_f32 {vr(V_L)}, {vr(V_L)}, {X(0)}")
    e(f"v_rcp_f32 {vr(V_RINV)}, {vr(V_L)}")
    e("s_waitcnt lgkmcnt(12)")
    e(mfma_pv(1, 1, 0))
    e(f"v_mov_b32 {vr(V_RINV+1)}, {vr(V_RINV)}")
    e(mfma_pv(1, 0, 1))
    e("s_waitcnt lgkmcnt(8)")
    e(mfma_pv(1, 1, 1))
    e(mfma_pv(1, 0, 2))
    e("s_waitcnt lgkmcnt(0)")
    e("s_nop 6")
    n0 = norm(0)
    for s in n0[:10]: e(s)
    e(mfma_pv(1, 1, 2))
    for s in n0[10:]: e(s)
    e(mfma_pv(1, 0, 3))
    n1 = norm(1)
    for s in n1[:10]: e(s)
    e(mfma_pv(1, 1, 3))
    for s in n1[10:]: e(s)
    e(mfma_pv(1, 0, 4))
    n2 = norm(2)
    for s in n2[:10]: e(s)
    e(mfma_pv(1, 1, 4))
    e("s_waitcnt lgkmcnt(0)")
    for s in back(0): e(s)
    for s in n2[10:]: e(s)
    e(mfma_pv(1, 0, 5))
    n3 = norm(3)
    for s in n3[:10]: e(s)
    e(mfma_pv(1, 1, 5))
    e("s_waitcnt lgkmcnt(4)")
    for s in store(0): e(s)
    for s in n3[10:]: e(s)
    for s in norm(4)[:16]: e(s)
    e("s_waitcnt lgkmcnt(0)")
    for s in back(1): e(s)
    for s in norm(4)[16:]: e(s)
    for s in norm(5)[:16]: e(s)
    e("s_waitcnt lgkmcnt(4)")
    for s in store(1): e(s)
    for s in norm(5)[16:]: e(s)
    e("s_waitcnt lgkmcnt(0)")
    for s in back(2): e(s)
    e("s_waitcnt lgkmcnt(0)")
    for s in store(2): e(s)
    if Opt.stamps:
        stamp(g, 5)
        e("s_waitcnt vmcnt(0)")
        stamp(g, 6)
        stamp_out(g)
    g.lab("L_end")
    e("s_endpgm")
    g.lab("L_first")
    e("s_nop 7"); e("s_nop 3")
    diag_mask_max(g, 1)
    e(f"s_mov_b32 {sr(S_FIRST)}, 0")
    e("s_branch L_first_back")
    for pos in range(4): rare_path(g, f"L_rare{pos}", pos & 1, f"L_back{pos}")
    rare_path(g, "L_rare4", 1, "L_back4")
    g.L.append(".p2align 6")
    g.L.append(".type L_table,@object")
    g.lab("L_table")
    for n, s, q0, Ln in T:
        ent = [(CU[s] + q0) * QROW, (Ln - q0) * QROW, CU[s] * KROW, min(Ln, q0 + 64) * KROW, n, (n - 1) * UNIT, 0, 0]
        g.L.append("    .long " + ", ".join(str(x) for x in ent))
    out += g.L
    out += ['.section .rodata,"a"', ".p2align 6", f".amdhsa_kernel {NAME}",
            "  .amdhsa_next_free_vgpr 400", "  .amdhsa_next_free_sgpr 102", "  .amdhsa_accum_offset 256",
            "  .amdhsa_group_segment_fixed_size 0", "  .amdhsa_kernarg_size 56", "  .amdhsa_user_sgpr_count 2",
            "  .amdhsa_user_sgpr_kernarg_segment_ptr 1", "  .amdhsa_system_sgpr_workgroup_id_x 1", ".end_amdhsa_kernel", ""]
    return "\n".join(out)

if __name__ == "__main__":
    import argparse
    ap = argparse.ArgumentParser()
    ap.add_argument("-o", default="k1.s")
    ap.add_argument("--stamps", action="store_true")
    ap.add_argument("--store", default="")
    ap.add_argument("--exp", default="")
    a = ap.parse_args()
    Opt.exp = a.exp
    Opt.stamps = a.stamps
    Opt.store_flags = (" " + a.store) if a.store else ""
    open(a.o, "w").write(build())
```
